```python
import torch

def _softmax(x, axis=-1):
    return torch.softmax(x, dim=axis)
def _gelu(x):
    return torch.nn.functional.gelu(x, approximate="tanh")
def _silu(x):
    return torch.nn.functional.silu(x)
def _sigmoid(x):
    return torch.sigmoid(x)
def _layernorm(x, axis=-1, eps=1e-5):
    m = x.mean(dim=axis, keepdim=True)
    v = x.var(dim=axis, keepdim=True, unbiased=False)
    return (x - m) / torch.sqrt(v + eps)
def _scatter_add(tgt, idx, src, axis=0):
    return tgt.clone().index_add_(axis, idx, src)
def _segment_sum(src, seg, n):
    out = torch.zeros((n,) + src.shape[1:], dtype=src.dtype)
    return out.index_add_(0, seg, src)
def _pad(x, pw):
    flat = tuple(v for pair in reversed(pw) for v in pair)
    return torch.nn.functional.pad(x, flat)

kernel_name = 'standalone__mha_softmax__sampling'

def setup_inputs():

    _w = (lambda a: (lambda t: t.to(torch.bfloat16) if t.is_floating_point() else t)(torch.as_tensor(a)))
    B, H, Sq, Sk, D = 32, 32, 1, 2048, 128
    return {
        "q": _w((lambda *s: torch.randn(*s, dtype=torch.bfloat16) * 0.8)(B, H, Sq, D)),
        "k": _w((lambda *s: torch.randn(*s, dtype=torch.bfloat16) * 0.8)(B, H, Sk, D)),
        "v": _w((lambda *s: torch.randn(*s, dtype=torch.bfloat16) * 0.05)(B, H, Sk, D)),
    }

def reference(q, k, v):
    scale = q.shape[-1] ** -0.5
    scores = torch.einsum("bhqd,bhkd->bhqk", q, k) * scale
    p = _softmax(scores, axis=-1)
    return torch.einsum("bhqk,bhkd->bhqd", p, v)
```

```python
import argparse, math, struct, sys

KNAME = "standalone__mha_softmax__sampling_kernel"
HEADER = """; Kernarg layout for this problem (48 bytes, ptrs only, base s[0:1]):
"""

def f32bits(x):
    return struct.unpack("<I", struct.pack("<f", x))[0]

def gen(W=4, T=4, D=3, flags="nt", mapping="inter", rot=0, pk=1, nocompute=0, vgpr_pad=0, kflags=None, vflags=None, bits=None, bar=0, stamp=0, remap=0):
    HEADB = 524288
    NWG = 1024
    NT = HEADB // (W * T * 1024)
    NP = 4 * W
    kflags = flags if kflags is None else kflags
    vflags = flags if vflags is None else vflags
    o = []
    A = o.append
    lds = NP * 512 + NP * 8
    A(HEADER.rstrip("\n"))
    A(f"; @launch grid=({NWG},1,1) block=({64*W},1,1) lds={lds}")
    A('.amdgcn_target "amdgcn-amd-amdhsa--gfx950"')
    A(".text")
    A(f".globl {KNAME}")
    A(".p2align 8")
    A(f".type {KNAME},@function")
    A(f"{KNAME}:")
    vTID, vOFF, vOFF2, vTMP = 0, 1, 2, 3
    vQ = 4
    vACC = 8
    vM, vL = 16, 17
    vAL, vMX = 18, 19
    vS = 20
    vU = vS + max(T, 4)
    vU = (vU + 1) // 2 * 2
    vRING = vU + 8
    vRING = (vRING + 3) // 4 * 4
    def KR(d, t): return vRING + (d * T + t) * 4
    def VR(d, t): return vRING + D * T * 4 + (d * T + t) * 4
    nvgpr = vRING + 2 * D * T * 4
    nvgpr_decl = max(nvgpr, vgpr_pad)
    sK, sV, sQ, sO = 16, 20, 24, 28
    sOFF, sCNT, sUSE, sC, sLOOP, sOOB = 12, 13, 14, 15, 32, 33
    sW = 36
    sX = 36
    c = (128 ** -0.5) * math.log2(math.e)

    A(f"    s_cmp_ge_u32 s2, {NWG}")
    A("    s_cbranch_scc1 L_end")
    A("    s_load_dwordx4 s[4:7], s[0:1], 0")
    A("    s_load_dwordx4 s[8:11], s[0:1], 16")
    if stamp:
        A("    s_load_dwordx2 s[92:93], s[0:1], 40")
        A("    s_memrealtime s[88:89]")
    lw = int(math.log2(W)); lt = int(math.log2(T))
    if bits is None:
        if mapping == "inter":
            bits = dict(g=[8, 9], t=list(range(10, 10 + lt)), w=list(range(10 + lt, 10 + lt + lw)))
        else:
            bits = dict(g=[8, 9], t=list(range(10, 10 + lt)), w=list(range(19 - lw, 19)))
    assert len(bits["g"]) == 2 and len(bits["t"]) == lt and len(bits["w"]) == lw
    used = bits["g"] + bits["t"] + bits["w"]
    assert len(set(used)) == len(used) and all(8 <= b <= 18 for b in used)
    ibits = [b for b in range(8, 19) if b not in used]
    imask = sum(1 << b for b in ibits)
    assert (1 << len(ibits)) == NT
    toff = [sum(((t >> k) & 1) << b for k, b in enumerate(bits["t"])) for t in range(T)]
    A(f"    v_and_b32 v{vOFF}, 15, v0")
    A(f"    v_lshlrev_b32 v{vOFF}, 4, v{vOFF}")
    for k, b in enumerate(bits["g"] + bits["w"]):
        A(f"    v_bfe_u32 v{vTMP}, v0, {4 + k}, 1")
        A(f"    v_lshl_or_b32 v{vOFF}, v{vTMP}, {b}, v{vOFF}")
    A(f"    v_and_b32 v{vTMP}, 15, v0")
    A(f"    v_lshlrev_b32 v{vTMP}, 4, v{vTMP}")
    if remap == 1:
        A("    s_and_b32 s3, s2, 7")
        A("    s_lshl_b32 s3, s3, 7")
        A("    s_lshr_b32 s2, s2, 3")
        A("    s_or_b32 s2, s2, s3")
    elif remap == 2:
        A("    s_lshr_b32 s3, s2, 3")
        A("    s_and_b32 s3, s3, 7")
        A("    s_xor_b32 s2, s2, s3")
    elif remap == 3:
        A("    s_xor_b32 s2, s2, 1")
    A(f"    s_lshl_b32 s3, s2, 19")
    A(f"    s_lshl_b32 s{sLOOP}, s2, 8")
    A(f"    s_mov_b32 s{sC}, 0x{f32bits(c):08x}")
    A(f"    s_mov_b32 s{sOOB}, 0x40000000")
    if rot:
        A(f"    s_mul_i32 s{sCNT}, s2, {rot}")
        A(f"    s_mov_b32 s{sOFF}, 0")
        for k, b in enumerate(ibits):
            A(f"    s_bfe_u32 s{sUSE}, s{sCNT}, {(1 << 16) | k}")
            A(f"    s_lshl_b32 s{sUSE}, s{sUSE}, {b}")
            A(f"    s_or_b32 s{sOFF}, s{sOFF}, s{sUSE}")
    else:
        A(f"    s_mov_b32 s{sOFF}, 0")
    A(f"    s_mov_b32 s{sCNT}, 0")
    A("    s_waitcnt lgkmcnt(0)")
    A(f"    s_add_u32 s{sQ}, s4, s{sLOOP}")
    A(f"    s_addc_u32 s{sQ+1}, s5, 0")
    A(f"    s_mov_b32 s{sQ+2}, 256")
    A(f"    s_mov_b32 s{sQ+3}, 0x00020000")
    A(f"    s_add_u32 s{sK}, s6, s3")
    A(f"    s_addc_u32 s{sK+1}, s7, 0")
    A(f"    s_mov_b32 s{sK+2}, {HEADB}")
    A(f"    s_mov_b32 s{sK+3}, 0x00020000")
    A(f"    s_add_u32 s{sV}, s8, s3")
    A(f"    s_addc_u32 s{sV+1}, s9, 0")
    A(f"    s_mov_b32 s{sV+2}, {HEADB}")
    A(f"    s_mov_b32 s{sV+3}, 0x00020000")
    A(f"    s_add_u32 s{sO}, s10, s{sLOOP}")
    A(f"    s_addc_u32 s{sO+1}, s11, 0")
    A(f"    s_mov_b32 s{sO+2}, 256")
    A(f"    s_mov_b32 s{sO+3}, 0x00020000")
    A(f"    buffer_load_dwordx4 v[{vQ}:{vQ+3}], v{vTMP}, s[{sQ}:{sQ+3}], 0 offen")

    his = sorted(set(x & ~4095 for x in toff))
    sUSEs = {h: (sUSE if h == 0 else sX + k) for k, h in enumerate(his)}
    def loads(reg, srd, d, fl):
        for t in range(T):
            off = toff[t] & 4095
            so = sUSEs[toff[t] & ~4095]
            r = reg(d, t)
            offs = f" offset:{off}" if off else ""
            A(f"    buffer_load_dwordx4 v[{r}:{r+3}], v{vOFF}, s[{srd}:{srd+3}], s{so} offen{offs} {fl}".rstrip())

    contig_i = (ibits == list(range(ibits[0], ibits[0] + len(ibits))))
    def advance():
        A(f"    s_cmp_lt_u32 s{sCNT}, {NT}")
        A(f"    s_cselect_b32 s{sUSE}, s{sOFF}, s{sOOB}")
        A(f"    s_add_u32 s{sCNT}, s{sCNT}, 1")
        for h in his:
            if h:
                A(f"    s_add_u32 s{sUSEs[h]}, s{sUSE}, {h}")
        if contig_i:
            A(f"    s_add_u32 s{sOFF}, s{sOFF}, {1 << ibits[0]}")
            if rot:
                A(f"    s_and_b32 s{sOFF}, s{sOFF}, {imask}")
        else:
            A(f"    s_or_b32 s{sOFF}, s{sOFF}, {(~imask) & 0xffffffff}")
            A(f"    s_add_u32 s{sOFF}, s{sOFF}, 1")
            A(f"    s_and_b32 s{sOFF}, s{sOFF}, {imask}")

    for d in range(D):
        advance()
        loads(KR, sK, d, kflags)
        loads(VR, sV, d, vflags)
    for e in range(8):
        A(f"    v_mov_b32 v{vACC+e}, 0")
    A(f"    v_mov_b32 v{vM}, 0xff800000")
    A(f"    v_mov_b32 v{vL}, 0")
    NW = (2 * D - 1) * T

    def tile(d):
        A(f"    s_waitcnt vmcnt({NW})")
        if not nocompute:
            for j in range(4):
                for t in range(T):
                    src2 = "0" if j == 0 else f"v{vS+t}"
                    A(f"    v_dot2_f32_bf16 v{vS+t}, v{KR(d,t)+j}, v{vQ+j}, {src2}")
                if T < 4 and j < 3:
                    pass
        else:
            for t in range(T):
                A(f"    v_xor_b32 v{vS+t}, v{KR(d,t)}, v{KR(d,t)+3}")
        advance()
        if bar & 1:
            A("    s_barrier")
        loads(KR, sK, d, kflags)
        if not nocompute:
            for sh in (8, 4, 2, 1):
                for t in range(T):
                    A(f"    v_add_f32_dpp v{vS+t}, v{vS+t}, v{vS+t} row_ror:{sh} row_mask:0xf bank_mask:0xf")
                if T < 3:
                    A(f"    s_nop {2 - T}")
            if T == 2:
                A(f"    v_max_f32 v{vMX}, v{vS}, v{vS+1}")
            elif T == 4:
                A(f"    v_max3_f32 v{vMX}, v{vS}, v{vS+1}, v{vS+2}")
                A(f"    v_max_f32 v{vMX}, v{vMX}, v{vS+3}")
            elif T == 8:
                A(f"    v_max3_f32 v{vMX}, v{vS}, v{vS+1}, v{vS+2}")
                A(f"    v_max3_f32 v{vAL}, v{vS+3}, v{vS+4}, v{vS+5}")
                A(f"    v_max3_f32 v{vMX}, v{vMX}, v{vS+6}, v{vS+7}")
                A(f"    v_max_f32 v{vMX}, v{vMX}, v{vAL}")
            elif T == 16:
                A(f"    v_max3_f32 v{vMX}, v{vS}, v{vS+1}, v{vS+2}")
                A(f"    v_max3_f32 v{vAL}, v{vS+3}, v{vS+4}, v{vS+5}")
                for k in range(6, 16, 4):
                    A(f"    v_max3_f32 v{vMX}, v{vMX}, v{vS+k}, v{vS+k+1}")
                    if k + 3 < 16:
                        A(f"    v_max3_f32 v{vAL}, v{vAL}, v{vS+k+2}, v{vS+k+3}")
                A(f"    v_max_f32 v{vMX}, v{vMX}, v{vAL}")
            elif T == 1:
                A(f"    v_mov_b32 v{vMX}, v{vS}")
            A(f"    v_mul_f32 v{vMX}, s{sC}, v{vMX}")
            A(f"    v_sub_f32 v{vAL}, v{vM}, v{vMX}")
            A(f"    v_max_f32 v{vM}, v{vM}, v{vMX}")
            A(f"    v_min_f32 v{vAL}, 0, v{vAL}")
            for t in range(T):
                A(f"    v_fma_f32 v{vS+t}, v{vS+t}, s{sC}, -v{vM}")
            A(f"    v_exp_f32 v{vAL}, v{vAL}")
            for t in range(T):
                A(f"    v_exp_f32 v{vS+t}, v{vS+t}")
            if pk:
                for e in range(0, 8, 2):
                    A(f"    v_pk_mul_f32 v[{vACC+e}:{vACC+e+1}], v[{vACC+e}:{vACC+e+1}], v[{vAL}:{vAL+1}] op_sel_hi:[1,0]")
            else:
                for e in range(8):
                    A(f"    v_mul_f32 v{vACC+e}, v{vAL}, v{vACC+e}")
            A(f"    v_fma_f32 v{vL}, v{vL}, v{vAL}, v{vS}")
            for t in range(1, T):
                A(f"    v_add_f32 v{vL}, v{vL}, v{vS+t}")
        A(f"    s_waitcnt vmcnt({NW})")
        if not nocompute:
            for t in range(T):
                r = VR(d, t)
                for j in range(4):
                    A(f"    v_lshlrev_b32 v{vU+2*j}, 16, v{r+j}")
                    A(f"    v_and_b32 v{vU+2*j+1}, 0xffff0000, v{r+j}")
                if pk:
                    pr = (vS + t) // 2 * 2
                    x = (vS + t) & 1
                    for j in range(4):
                        A(f"    v_pk_fma_f32 v[{vACC+2*j}:{vACC+2*j+1}], v[{vU+2*j}:{vU+2*j+1}], v[{pr}:{pr+1}], v[{vACC+2*j}:{vACC+2*j+1}] op_sel:[0,{x},0] op_sel_hi:[1,{x},1]")
                else:
                    for e in range(8):
                        A(f"    v_fmac_f32 v{vACC+e}, v{vS+t}, v{vU+e}")
        else:
            for t in range(T):
                A(f"    v_xor_b32 v{vACC}, v{vACC}, v{vS+t}")
                A(f"    v_xor_b32 v{vACC+1}, v{VR(d,t)}, v{vACC+1}")
                A(f"    v_xor_b32 v{vACC+2}, v{VR(d,t)+3}, v{vACC+2}")
        if bar & 2:
            A("    s_barrier")
        loads(VR, sV, d, vflags)

    NL = NT // D
    REM = NT - NL * D
    A(f"    s_mov_b32 s{sLOOP}, {NL}")
    A("    .p2align 3")
    A("L_loop:")
    for d in range(D):
        tile(d)
    A(f"    s_sub_u32 s{sLOOP}, s{sLOOP}, 1")
    A(f"    s_cmp_lg_u32 s{sLOOP}, 0")
    A("    s_cbranch_scc1 L_loop")
    for d in range(REM):
        tile(d)
    A("    s_waitcnt vmcnt(0)")
    vA, vB, vCc = vU, vU + 1, vU + 2
    A(f"    v_lshlrev_b32 v{vA}, 5, v0")
    A(f"    v_lshrrev_b32 v{vB}, 4, v0")
    A(f"    v_lshlrev_b32 v{vB}, 3, v{vB}")
    A(f"    ds_write_b128 v{vA}, v[{vACC}:{vACC+3}]")
    A(f"    ds_write_b128 v{vA}, v[{vACC+4}:{vACC+7}] offset:16")
    A(f"    ds_write_b64 v{vB}, v[{vM}:{vM+1}] offset:{NP*512}")
    A("    s_waitcnt lgkmcnt(0)")
    A("    s_barrier")
    A(f"    v_cmp_gt_u32 vcc, 64, v0")
    A("    s_and_saveexec_b64 s[34:35], vcc")
    A("    s_cbranch_execz L_end")
    A(f"    v_and_b32 v{vB}, {NP-1}, v0")
    A(f"    v_lshlrev_b32 v{vB}, 3, v{vB}")
    A(f"    ds_read_b64 v[{vM}:{vM+1}], v{vB} offset:{NP*512}")
    A(f"    v_lshlrev_b32 v{vA}, 3, v0")
    G = min(NP, 16)
    need = vRING + 2 * G
    for i in range(G):
        A(f"    ds_read_b64 v[{vRING+2*i}:{vRING+2*i+1}], v{vA} offset:{i*512}")
        if i % 8 == 7:
            A("    s_waitcnt lgkmcnt(4)")
    nvgpr_decl = max(nvgpr_decl, need)
    A("    s_waitcnt lgkmcnt(0)")
    A(f"    v_mov_b32 v{vMX}, v{vM}")
    A("    s_nop 1")
    for sh in (1, 2, 4, 8):
        A(f"    v_max_f32_dpp v{vMX}, v{vMX}, v{vMX} row_ror:{sh} row_mask:0xf bank_mask:0xf")
        A("    s_nop 1")
    for sw in ("v_permlane16_swap_b32", "v_permlane32_swap_b32"):
        A(f"    v_mov_b32 v{vAL}, v{vMX}")
        A("    s_nop 1")
        A(f"    {sw} v{vAL}, v{vMX}")
        A("    s_nop 1")
        A(f"    v_max_f32 v{vMX}, v{vAL}, v{vMX}")
        A("    s_nop 1")
    A(f"    v_sub_f32 v{vM}, v{vM}, v{vMX}")
    A(f"    v_exp_f32 v{vM}, v{vM}")
    A("    s_nop 1")
    A(f"    v_mul_f32 v{vL}, v{vL}, v{vM}")
    A("    s_nop 1")
    sh = 1
    while sh < min(NP, 16):
        A(f"    v_add_f32_dpp v{vL}, v{vL}, v{vL} row_ror:{sh} row_mask:0xf bank_mask:0xf")
        A("    s_nop 1")
        sh *= 2
    sws = []
    if NP >= 32: sws.append("v_permlane16_swap_b32")
    if NP >= 64: sws.append("v_permlane32_swap_b32")
    for sw in sws:
        A(f"    v_mov_b32 v{vAL}, v{vL}")
        A("    s_nop 1")
        A(f"    {sw} v{vAL}, v{vL}")
        A("    s_nop 1")
        A(f"    v_add_f32 v{vL}, v{vAL}, v{vL}")
        A("    s_nop 1")
    A(f"    v_rcp_f32 v{vL}, v{vL}")
    A("    s_nop 1")
    A(f"    v_mul_f32 v{vM}, v{vM}, v{vL}")
    A("    s_nop 1")
    for i in range(NP):
        A(f"    v_readlane_b32 s{sW+i}, v{vM}, {i}")
    A(f"    v_mov_b32 v{vACC}, 0")
    A(f"    v_mov_b32 v{vACC+1}, 0")
    A("    s_nop 1")
    for g0 in range(0, NP, G):
        if g0:
            for i in range(G):
                A(f"    ds_read_b64 v[{vRING+2*i}:{vRING+2*i+1}], v{vA} offset:{(g0+i)*512}")
                if i % 8 == 7:
                    A("    s_waitcnt lgkmcnt(4)")
            A("    s_waitcnt lgkmcnt(0)")
        for i in range(G):
            A(f"    v_fmac_f32 v{vACC}, s{sW+g0+i}, v{vRING+2*i}")
            A(f"    v_fmac_f32 v{vACC+1}, s{sW+g0+i}, v{vRING+2*i+1}")
    A(f"    v_cvt_pk_bf16_f32 v{vACC}, v{vACC}, v{vACC+1}")
    A(f"    v_lshlrev_b32 v{vA}, 2, v0")
    A(f"    buffer_store_dword v{vACC}, v{vA}, s[{sO}:{sO+3}], 0 offen")
    if stamp:
        A("    s_memrealtime s[90:91]")
        A("    s_getreg_b32 s86, hwreg(HW_REG_XCC_ID)")
        A("    s_getreg_b32 s87, hwreg(HW_REG_HW_ID)")
        A("    s_mov_b32 s94, 0x100000")
        A("    s_mov_b32 s95, 0x00020000")
        A("    s_waitcnt lgkmcnt(0)")
        A("    v_mov_b32 v8, s88")
        A("    v_mov_b32 v9, s90")
        A("    v_mov_b32 v10, s86")
        A("    v_mov_b32 v11, s87")
        A("    s_lshl_b32 s3, s2, 4")
        A("    v_mov_b32 v12, s3")
        A("    buffer_store_dwordx4 v[8:11], v12, s[92:95], 0 offen")
    A("L_end:")
    A("    s_endpgm")
    A('.section .rodata,"a"')
    A(".p2align 6")
    A(f".amdhsa_kernel {KNAME}")
    A(f"  .amdhsa_next_free_vgpr {nvgpr_decl}")
    A(f"  .amdhsa_next_free_sgpr {(100 if stamp else max(sW+NP, 56))}")
    A(f"  .amdhsa_accum_offset {min(256,(nvgpr_decl+3)//4*4)}")
    A("  .amdhsa_group_segment_fixed_size 0")
    A("  .amdhsa_kernarg_size 48")
    A("  .amdhsa_user_sgpr_count 2")
    A("  .amdhsa_user_sgpr_kernarg_segment_ptr 1")
    A("  .amdhsa_system_sgpr_workgroup_id_x 1")
    A(".end_amdhsa_kernel")
    return "\n".join(o) + "\n"

if __name__ == "__main__":
    ap = argparse.ArgumentParser()
    ap.add_argument("-W", type=int, default=4)
    ap.add_argument("-T", type=int, default=4)
    ap.add_argument("-D", type=int, default=3)
    ap.add_argument("--flags", default="nt")
    ap.add_argument("--mapping", default="inter")
    ap.add_argument("--rot", type=int, default=0)
    ap.add_argument("--pk", type=int, default=1)
    ap.add_argument("--nocompute", type=int, default=0)
    ap.add_argument("--vgpr_pad", type=int, default=0)
    ap.add_argument("-o", default="-")
    a = ap.parse_args()
    s = gen(a.W, a.T, a.D, a.flags, a.mapping, a.rot, a.pk, a.nocompute, a.vgpr_pad)
    if a.o == "-":
        sys.stdout.write(s)
    else:
        open(a.o, "w").write(s)
```

```python
import math, struct, sys
from gen import HEADER, KNAME, f32bits

def gen4(W=4, R=2, F=8, flags="nt", bits=None, hmode=256, HPW=4, lds_min=83968, stamp=0, vgpr_pad=0, dbgstamp=0, rot=None, FV=None, early=0, vwarm=0):
    T = 4
    HEADB = 524288
    NH = 1024
    G = NH // HPW
    NP = 4 * W
    STEP = W * T * 1024
    NTH = HEADB // STEP
    assert NTH % R == 0 and NTH >= 16 and R % 2 == 0 and 1 <= F <= 4 * R
    NIT = NTH // R
    FV = F if FV is None else FV
    assert F <= FV <= 4 * R and (not early or FV <= 4 * R - 1)
    lw = int(math.log2(W))
    if bits is None:
        bits = dict(g=[8, 9], t=[12, 13], w=[10, 11] + list(range(14, 14 + lw - 2)))
    used = bits["g"] + bits["t"] + bits["w"]
    assert sorted(used) == list(range(8, 12 + lw)), "tile step must be contiguous"
    toff = [sum(((t >> k) & 1) << b for k, b in enumerate(bits["t"])) for t in range(T)]
    SC_WAVE = HPW * NTH * 64
    LDS_SC = 0
    LDS_ML = W * SC_WAVE
    LDS_ACC = LDS_ML + HPW * NP * 8
    lds = max(LDS_ACC + HPW * NP * 512, lds_min)
    assert LDS_ML + HPW * NP * 8 <= 65536
    assert lds <= 160 * 1024
    o = []
    A = o.append
    A(HEADER.rstrip("\n"))
    A(f"; @launch grid=({G},1,1) block=({64*W},1,1) lds={lds}")
    A('.amdgcn_target "amdgcn-amd-amdhsa--gfx950"')
    A(".text")
    A(f".globl {KNAME}")
    A(".p2align 8")
    A(f".type {KNAME},@function")
    A(f"{KNAME}:")
    vOFF, vTMP, vSW, vSR = 1, 2, 3, 4
    vDA, vMR, vY, vZ = 5, 6, 7, 8
    vUu = 9
    vACC = 10
    vX = 18
    vP = 22
    vU = 30
    vMH = 38
    vQ = (vMH + HPW + 3) // 4 * 4
    vRING = vQ + 4 * HPW
    def SL(r, t): return vRING + (r * T + t) * 4
    nvgpr = max(vRING + R * T * 4, vRING + 32, vgpr_pad)
    sK, sV, sLD, sQ, sO, sWS = 16, 20, 24, 28, 32, 36
    sLOFF, sSEG, sIT, sHK, sC, sJB, sT0, sT1 = range(40, 48)
    sX = 48
    sLLEFT = 54
    sROT, sLST = 55, 47 if False else 53
    sHB = 12 if not (stamp or dbgstamp) else 96
    sW = 56
    sEX = 88
    c = (128 ** -0.5) * math.log2(math.e)
    HSTRIDE = (hmode * HEADB) if hmode != 1 else HEADB
    QSTRIDE = HSTRIDE // 2048

    A(f"    s_cmp_ge_u32 s2, {G}")
    A("    s_cbranch_scc1 L_end")
    A("    s_load_dwordx8 s[4:11], s[0:1], 0")
    if dbgstamp:
        stamp = 1
    if stamp:
        A(f"    s_load_dwordx2 s[12:13], s[0:1], {32 if dbgstamp else 40}")
        A("    s_memrealtime s[90:91]")
    A(f"    v_and_b32 v{vTMP}, 15, v0")
    A(f"    v_lshlrev_b32 v{vU}, 4, v{vTMP}")
    A(f"    v_mov_b32 v{vOFF}, v{vU}")
    for k, b in enumerate(bits["g"] + bits["w"]):
        A(f"    v_bfe_u32 v{vY}, v0, {4 + k}, 1")
        A(f"    v_lshl_or_b32 v{vOFF}, v{vY}, {b}, v{vOFF}")
    assert HPW == 4
    if hmode == 1:
        A(f"    s_lshl_b32 s{sHB}, s2, 21")
        for k in range(1, 4):
            A(f"    s_add_u32 s{sHB+k}, s{sHB}, {k * HEADB}")
    elif hmode == 256:
        A(f"    s_lshl_b32 s{sHB}, s2, 19")
        for k in range(1, 4):
            A(f"    s_add_u32 s{sHB+k}, s{sHB}, {k * 256 * HEADB}")
    elif hmode == 2:
        A(f"    s_lshl_b32 s{sHB}, s2, 20")
        A(f"    s_add_u32 s{sHB+1}, s{sHB}, {HEADB}")
        A(f"    s_add_u32 s{sHB+2}, s{sHB}, {512 * HEADB}")
        A(f"    s_add_u32 s{sHB+3}, s{sHB}, {513 * HEADB}")
    elif hmode == 3:
        A(f"    s_lshl_b32 s{sHB}, s2, 19")
        A(f"    s_sub_u32 s{sHB+1}, {511 * HEADB}, s{sHB}")
        A(f"    s_add_u32 s{sHB+2}, s{sHB}, {512 * HEADB}")
        A(f"    s_sub_u32 s{sHB+3}, {1023 * HEADB}, s{sHB}")
    elif hmode == 4:
        A(f"    s_lshl_b32 s{sT0}, s2, 21")
        A(f"    s_lshr_b32 s{sT1}, s2, 6")
        for k in range(4):
            A(f"    s_add_u32 s{sHB+k}, s{sT1}, {k}")
            A(f"    s_and_b32 s{sHB+k}, s{sHB+k}, 3")
            A(f"    s_lshl_b32 s{sHB+k}, s{sHB+k}, 19")
            A(f"    s_add_u32 s{sHB+k}, s{sHB+k}, s{sT0}")
    else:
        raise ValueError
    A(f"    s_mov_b32 s{sC}, 0x{f32bits(c):08x}")
    for r in (sK, sV, sLD, sQ, sO):
        A(f"    s_mov_b32 s{r+3}, 0x00020000")
    A(f"    s_mov_b32 s{sK+2}, 0x20000000")
    A(f"    s_mov_b32 s{sV+2}, 0x20000000")
    A(f"    s_mov_b32 s{sLD+2}, 0x20000000")
    A(f"    s_mov_b32 s{sQ+2}, 0x40000")
    A(f"    s_mov_b32 s{sO+2}, 0x40000")
    if rot:
        mul, sh = rot
        A(f"    s_lshr_b32 s{sROT}, s2, {sh}")
        A(f"    s_mul_i32 s{sROT}, s{sROT}, {mul}")
        A(f"    s_and_b32 s{sROT}, s{sROT}, {NTH-1}")
        A(f"    s_mul_i32 s{sROT}, s{sROT}, {STEP}")
        A(f"    s_mov_b32 s{sLST}, s{sROT}")
        A(f"    s_add_u32 s{sLOFF}, s{sHB}, s{sROT}")
    else:
        A(f"    s_mov_b32 s{sLOFF}, s{sHB}")
    A(f"    s_mov_b32 s{sSEG}, 0")
    A("    s_waitcnt lgkmcnt(0)")
    A(f"    s_mov_b32 s{sQ}, s4")
    A(f"    s_mov_b32 s{sQ+1}, s5")
    A(f"    s_mov_b32 s{sLD}, s6")
    A(f"    s_mov_b32 s{sLD+1}, s7")
    A(f"    s_mov_b32 s{sV}, s8")
    A(f"    s_mov_b32 s{sV+1}, s9")
    A(f"    s_mov_b32 s{sO}, s10")
    A(f"    s_mov_b32 s{sO+1}, s11")
    if vwarm:
        A(f"    buffer_load_dword v{vP}, v{vU}, s[{sV}:{sV+3}], s{sHB} offen {flags}")
    for h in range(HPW):
        A(f"    s_lshr_b32 s{sT0}, s{sHB+h}, 11")
        A(f"    buffer_load_dwordx4 v[{vQ+4*h}:{vQ+4*h+3}], v{vU}, s[{sQ}:{sQ+3}], s{sT0} offen")

    his = sorted(set(x & ~4095 for x in toff))
    sUSEs = {h: (sLOFF if h == 0 else sX + k) for k, h in enumerate(his)}
    tagc = [0]
    def advance_step():
        tagc[0] += 1
        tag = tagc[0]
        if rot:
            A(f"    s_add_u32 s{sLST}, s{sLST}, {STEP}")
            A(f"    s_and_b32 s{sLST}, s{sLST}, {HEADB-1}")
            A(f"    s_add_u32 s{sLOFF}, s{sHB}, s{sLST}")
        else:
            A(f"    s_add_u32 s{sLOFF}, s{sLOFF}, {STEP}")
        A(f"    s_sub_u32 s{sLLEFT}, s{sLLEFT}, 1")
        A(f"    s_cmp_lg_u32 s{sLLEFT}, 0")
        A(f"    s_cbranch_scc1 L_nosw{tag}")
        A(f"    s_mov_b32 s{sLLEFT}, {NTH}")
        A(f"    s_add_u32 s{sSEG}, s{sSEG}, 1")
        A(f"    s_mov_b32 s{sT0}, s{sHB}")
        for k in range(HPW - 1):
            A(f"    s_mov_b32 s{sHB+k}, s{sHB+k+1}")
        A(f"    s_mov_b32 s{sHB+HPW-1}, s{sT0}")
        if rot:
            A(f"    s_add_u32 s{sLOFF}, s{sHB}, s{sLST}")
        else:
            A(f"    s_mov_b32 s{sLOFF}, s{sHB}")
        A(f"    s_cmp_lt_u32 s{sSEG}, {HPW}")
        A(f"    s_cbranch_scc1 L_nosw{tag}")
        A(f"    s_mov_b32 s{sLD}, s{sV}")
        A(f"    s_mov_b32 s{sLD+1}, s{sV+1}")
        A(f"    s_cmp_lt_u32 s{sSEG}, {2*HPW}")
        A(f"    s_cselect_b32 s{sLD+2}, s{sV+2}, 0")
        A(f"L_nosw{tag}:")
        sethi()
    def sethi():
        for h in his:
            if h:
                A(f"    s_add_u32 s{sUSEs[h]}, s{sLOFF}, {h}")
    def load1(idx):
        idx %= 4 * R
        r, t = idx // 4, idx % 4
        off = toff[t] & 4095
        so = sUSEs[toff[t] & ~4095]
        rr = SL(r, t)
        offs = f" offset:{off}" if off else ""
        A(f"    buffer_load_dwordx4 v[{rr}:{rr+3}], v{vOFF}, s[{sLD}:{sLD+3}], s{so} offen{offs} {flags}".rstrip())
        if t == 3:
            advance_step()
    A(f"    s_mov_b32 s{sLLEFT}, {NTH}")
    sethi()
    for i in range(F):
        load1(i)
    A(f"    v_lshrrev_b32 v{vY}, 6, v0")
    A(f"    v_mul_u32_u24 v{vY}, {SC_WAVE}, v{vY}")
    A(f"    v_bfe_u32 v{vZ}, v0, 4, 2")
    A(f"    v_lshl_add_u32 v{vSR}, v{vZ}, 4, v{vY}")
    A(f"    v_bfe_u32 v{vZ}, v0, 2, 1")
    A(f"    v_lshl_add_u32 v{vSW}, v{vZ}, 3, v{vSR}")
    A(f"    v_bfe_u32 v{vZ}, v0, 3, 1")
    A(f"    v_lshl_add_u32 v{vSW}, v{vZ}, 2, v{vSW}")
    A(f"    v_lshlrev_b32 v{vDA}, 5, v0")
    A(f"    v_add_u32 v{vDA}, {LDS_ACC}, v{vDA}")
    A(f"    v_mov_b32 v{vMR}, 0xff800000")
    for e in range(8):
        A(f"    v_mov_b32 v{vACC+e}, 0")
    NW = (R - 1) * T

    def kstep(r):
        for t in range(T):
            A(f"    s_waitcnt vmcnt({F-1})")
            if early:
                load1(r * 4 + t + F)
            for j in range(4):
                src2 = "0" if j == 0 else f"v{vX+t}"
                A(f"    v_dot2_f32_bf16 v{vX+t}, v{SL(r,t)+j}, v{vQ+j}, {src2}")
            if not early:
                load1(r * 4 + t + F)
        A("    s_nop 2" if early else "    s_nop 1")
        A(f"    v_add_f32_dpp v{vY}, v{vX}, v{vX} row_ror:8 row_mask:0xf bank_mask:0x3")
        A(f"    v_add_f32_dpp v{vZ}, v{vX+2}, v{vX+2} row_ror:8 row_mask:0xf bank_mask:0x3")
        A(f"    v_add_f32_dpp v{vY}, v{vX+1}, v{vX+1} row_ror:8 row_mask:0xf bank_mask:0xc")
        A(f"    v_add_f32_dpp v{vZ}, v{vX+3}, v{vX+3} row_ror:8 row_mask:0xf bank_mask:0xc")
        A("    s_nop 1")
        A(f"    v_add_f32_dpp v{vUu}, v{vY}, v{vY} row_half_mirror row_mask:0xf bank_mask:0x5")
        A(f"    v_add_f32_dpp v{vUu}, v{vZ}, v{vZ} row_half_mirror row_mask:0xf bank_mask:0xa")
        A("    s_nop 1")
        A(f"    v_add_f32_dpp v{vUu}, v{vUu}, v{vUu} quad_perm:[1,0,3,2] row_mask:0xf bank_mask:0xf")
        A("    s_nop 1")
        A(f"    v_add_f32_dpp v{vUu}, v{vUu}, v{vUu} quad_perm:[2,3,0,1] row_mask:0xf bank_mask:0xf")
        A(f"    v_max_f32 v{vMR}, v{vMR}, v{vUu}")
        offs = f" offset:{r*64}" if r else ""
        A(f"    ds_write_b32 v{vSW}, v{vUu}{offs}")

    A(f"    s_mov_b32 s{sHK}, {HPW}")
    A("L_khead:")
    A(f"    s_mov_b32 s{sIT}, {NIT}")
    A("    .p2align 3")
    A("L_kloop:")
    for r in range(R):
        kstep(r)
    A(f"    v_add_u32 v{vSW}, {R*64}, v{vSW}")
    A(f"    s_sub_u32 s{sIT}, s{sIT}, 1")
    A(f"    s_cmp_lg_u32 s{sIT}, 0")
    A("    s_cbranch_scc1 L_kloop")
    for h in range(HPW - 1):
        A(f"    v_mov_b32 v{vMH+h}, v{vMH+h+1}")
    A(f"    v_max_f32_dpp v{vMR}, v{vMR}, v{vMR} row_ror:4 row_mask:0xf bank_mask:0xf")
    A("    s_nop 1")
    for k in range(4 * (HPW - 1)):
        A(f"    v_mov_b32 v{vQ+k}, v{vQ+k+4}")
    A(f"    v_max_f32_dpp v{vMR}, v{vMR}, v{vMR} row_ror:8 row_mask:0xf bank_mask:0xf")
    A(f"    s_sub_u32 s{sHK}, s{sHK}, 1")
    A(f"    s_cmp_lg_u32 s{sHK}, 0")
    A(f"    v_mul_f32 v{vMH+HPW-1}, s{sC}, v{vMR}")
    A(f"    v_mov_b32 v{vMR}, 0xff800000")
    A("    s_cbranch_scc1 L_khead")
    for i in range(F, FV):
        load1(i)
    A(f"    v_and_b32 v{vTMP}, 15, v0")
    A(f"    v_lshl_add_u32 v{vTMP}, v{vTMP}, 6, v{vSR}")
    A(f"    v_lshrrev_b32 v{vY}, 4, v0")
    A(f"    v_lshlrev_b32 v{vY}, 3, v{vY}")
    NJ = NTH // 16
    chunks = [(h, j) for h in range(HPW) for j in range(NJ)]
    vL = vX
    assert HPW <= 4
    for h in range(HPW):
        A(f"    v_mov_b32 v{vL+h}, 0")
    for c0 in range(0, len(chunks), 4):
        grp = chunks[c0:c0 + 4]
        for i, (h, j) in enumerate(grp):
            A(f"    ds_read_b128 v[{vP+4*i}:{vP+4*i+3}], v{vTMP} offset:{(h*NTH+16*j)*64}")
        A("    s_waitcnt lgkmcnt(0)")
        for i, (h, j) in enumerate(grp):
            for e in range(4):
                A(f"    v_fma_f32 v{vP+4*i+e}, v{vP+4*i+e}, s{sC}, -v{vMH+h}")
        for i, (h, j) in enumerate(grp):
            for e in range(4):
                A(f"    v_exp_f32 v{vP+4*i+e}, v{vP+4*i+e}")
        A("    s_nop 0")
        for i, (h, j) in enumerate(grp):
            A(f"    ds_write_b128 v{vTMP}, v[{vP+4*i}:{vP+4*i+3}] offset:{(h*NTH+16*j)*64}")
            for e in range(4):
                A(f"    v_add_f32 v{vL+h}, v{vL+h}, v{vP+4*i+e}")
        A("    s_waitcnt lgkmcnt(0)")
    A("    s_nop 1")
    for sh in (8, 4, 2, 1):
        for h in range(HPW):
            A(f"    v_add_f32_dpp v{vL+h}, v{vL+h}, v{vL+h} row_ror:{sh} row_mask:0xf bank_mask:0xf")
        if HPW < 3:
            A(f"    s_nop {2 - HPW}")
    for h in range(HPW):
        A(f"    v_mov_b32 v{vU+2*h}, v{vMH+h}")
        A(f"    v_mov_b32 v{vU+2*h+1}, v{vL+h}")
    for h in range(HPW):
        A(f"    ds_write_b64 v{vY}, v[{vU+2*h}:{vU+2*h+1}] offset:{LDS_ML + h*NP*8}")
    A(f"    ds_read_b128 v[{vP}:{vP+3}], v{vSR}")

    def vstep(r):
        cur = vP + 4 * (r & 1)
        nxt = vP + 4 * ((r + 1) & 1)
        for t in range(T):
            rr = SL(r, t)
            if t == 0:
                A(f"    s_waitcnt vmcnt({FV-1}) lgkmcnt(0)")
                if early:
                    load1(r * 4 + t + FV)
                A(f"    ds_read_b128 v[{nxt}:{nxt+3}], v{vSR} offset:{(r+1)*64}")
            else:
                A(f"    s_waitcnt vmcnt({FV-1})")
                if early:
                    load1(r * 4 + t + FV)
            for j in range(4):
                A(f"    v_lshlrev_b32 v{vU+2*j}, 16, v{rr+j}")
                A(f"    v_and_b32 v{vU+2*j+1}, 0xffff0000, v{rr+j}")
            pr = (cur + t) // 2 * 2
            x = (cur + t) & 1
            for j in range(4):
                A(f"    v_pk_fma_f32 v[{vACC+2*j}:{vACC+2*j+1}], v[{vU+2*j}:{vU+2*j+1}], v[{pr}:{pr+1}], v[{vACC+2*j}:{vACC+2*j+1}] op_sel:[0,{x},0] op_sel_hi:[1,{x},1]")
            if not early:
                load1(r * 4 + t + FV)

    A(f"    s_mov_b32 s{sHK}, {HPW}")
    A("L_vhead:")
    A(f"    s_mov_b32 s{sIT}, {NIT}")
    A("    .p2align 3")
    A("L_vloop:")
    for r in range(R):
        vstep(r)
    A(f"    v_add_u32 v{vSR}, {R*64}, v{vSR}")
    A(f"    s_sub_u32 s{sIT}, s{sIT}, 1")
    A(f"    s_cmp_lg_u32 s{sIT}, 0")
    A("    s_cbranch_scc1 L_vloop")
    A(f"    ds_write_b128 v{vDA}, v[{vACC}:{vACC+3}]")
    A(f"    ds_write_b128 v{vDA}, v[{vACC+4}:{vACC+7}] offset:16")
    A(f"    s_sub_u32 s{sHK}, s{sHK}, 1")
    A(f"    s_cmp_lg_u32 s{sHK}, 0")
    A(f"    v_add_u32 v{vDA}, {NP*512}, v{vDA}")
    A("    s_waitcnt lgkmcnt(0)")
    for e in range(8):
        A(f"    v_mov_b32 v{vACC+e}, 0")
    A("    s_cbranch_scc1 L_vhead")
    A("    s_waitcnt vmcnt(0)")
    A("    s_barrier")
    A(f"    v_cmp_gt_u32 vcc, {64*HPW}, v0")
    A(f"    s_and_saveexec_b64 s[{sEX}:{sEX+1}], vcc")
    A("    s_cbranch_execz L_end")
    vA, vB, vM, vLL, vMX, vAL = vU, vU + 1, vP, vP + 1, vP + 2, vP + 3
    A(f"    v_lshrrev_b32 v{vY}, 6, v0")
    A(f"    v_and_b32 v{vZ}, 63, v0")
    A(f"    v_and_b32 v{vB}, {NP-1}, v0")
    A(f"    v_lshlrev_b32 v{vB}, 3, v{vB}")
    A(f"    v_mul_u32_u24 v{vTMP}, {NP*8}, v{vY}")
    A(f"    v_add_u32 v{vB}, v{vB}, v{vTMP}")
    A(f"    ds_read_b64 v[{vM}:{vM+1}], v{vB} offset:{LDS_ML}")
    A(f"    v_mul_u32_u24 v{vTMP}, {NP*512}, v{vY}")
    A(f"    v_lshl_add_u32 v{vA}, v{vZ}, 3, v{vTMP}")
    A(f"    v_add_u32 v{vA}, {LDS_ACC}, v{vA}")
    Gp = 16
    for i in range(Gp):
        A(f"    ds_read_b64 v[{vRING+2*i}:{vRING+2*i+1}], v{vA} offset:{i*512}")
        if i % 8 == 7:
            A("    s_waitcnt lgkmcnt(4)")
    A(f"    v_readfirstlane_b32 s{sT1}, v{vY}")
    A("    s_waitcnt lgkmcnt(0)")
    A(f"    v_mov_b32 v{vMX}, v{vM}")
    A("    s_nop 1")
    for sh in (1, 2, 4, 8):
        A(f"    v_max_f32_dpp v{vMX}, v{vMX}, v{vMX} row_ror:{sh} row_mask:0xf bank_mask:0xf")
        A("    s_nop 1")
    sws = ["v_permlane16_swap_b32"] if NP >= 32 else []
    assert NP <= 32
    for sw in sws:
        A(f"    v_mov_b32 v{vAL}, v{vMX}")
        A("    s_nop 1")
        A(f"    {sw} v{vAL}, v{vMX}")
        A("    s_nop 1")
        A(f"    v_max_f32 v{vMX}, v{vAL}, v{vMX}")
        A("    s_nop 1")
    A(f"    v_sub_f32 v{vM}, v{vM}, v{vMX}")
    A(f"    v_exp_f32 v{vM}, v{vM}")
    A("    s_nop 1")
    A(f"    v_mul_f32 v{vLL}, v{vLL}, v{vM}")
    A("    s_nop 1")
    for sh in (1, 2, 4, 8):
        A(f"    v_add_f32_dpp v{vLL}, v{vLL}, v{vLL} row_ror:{sh} row_mask:0xf bank_mask:0xf")
        A("    s_nop 1")
    for sw in sws:
        A(f"    v_mov_b32 v{vAL}, v{vLL}")
        A("    s_nop 1")
        A(f"    {sw} v{vAL}, v{vLL}")
        A("    s_nop 1")
        A(f"    v_add_f32 v{vLL}, v{vAL}, v{vLL}")
        A("    s_nop 1")
    A(f"    v_rcp_f32 v{vLL}, v{vLL}")
    A("    s_nop 1")
    A(f"    v_mul_f32 v{vM}, v{vM}, v{vLL}")
    A("    s_nop 1")
    for i in range(NP):
        A(f"    v_readlane_b32 s{sW+i}, v{vM}, {i}")
    A(f"    v_mov_b32 v{vACC}, 0")
    A(f"    v_mov_b32 v{vACC+1}, 0")
    A(f"    s_mov_b32 s{sT0}, s{sHB}")
    for k in range(1, HPW):
        A(f"    s_cmp_eq_u32 s{sT1}, {k}")
        A(f"    s_cselect_b32 s{sT0}, s{sHB+k}, s{sT0}")
    A(f"    s_lshr_b32 s{sT1}, s{sT0}, 11")
    for g0 in range(0, NP, Gp):
        if g0:
            for i in range(Gp):
                A(f"    ds_read_b64 v[{vRING+2*i}:{vRING+2*i+1}], v{vA} offset:{(g0+i)*512}")
                if i % 8 == 7:
                    A("    s_waitcnt lgkmcnt(4)")
            A("    s_waitcnt lgkmcnt(0)")
        for i in range(Gp):
            A(f"    v_fmac_f32 v{vACC}, s{sW+g0+i}, v{vRING+2*i}")
            A(f"    v_fmac_f32 v{vACC+1}, s{sW+g0+i}, v{vRING+2*i+1}")
    A(f"    v_cvt_pk_bf16_f32 v{vACC}, v{vACC}, v{vACC+1}")
    A(f"    v_lshlrev_b32 v{vZ}, 2, v{vZ}")
    A(f"    buffer_store_dword v{vACC}, v{vZ}, s[{sO}:{sO+3}], s{sT1} offen")
    if stamp:
        A("    v_cmp_eq_u32 vcc, 0, v0")
        A(f"    s_and_saveexec_b64 s[{sEX}:{sEX+1}], vcc")
        A("    s_cbranch_execz L_end")
        A("    s_memrealtime s[92:93]")
        A(f"    s_getreg_b32 s{sT0}, hwreg(HW_REG_XCC_ID)")
        A(f"    s_mov_b32 s{sWS}, s12")
        A(f"    s_mov_b32 s{sWS+1}, s13")
        A(f"    s_mov_b32 s{sWS+2}, 0x200000")
        A(f"    s_mov_b32 s{sWS+3}, 0x00020000")
        A("    s_waitcnt lgkmcnt(0)")
        if dbgstamp:
            A(f"    s_mov_b32 s{sWS+2}, 256")
            A("    s_not_b32 s90, s90")
            A("    s_not_b32 s91, s94")
            A("    s_not_b32 s93, s92")
            for k, sr in enumerate((90, 92, 91, 94, 93)):
                A(f"    v_mov_b32 v12, s{sr}")
                A(f"    v_mov_b32 v13, {4*k}")
                A(f"    buffer_atomic_umax v12, v13, s[{sWS}:{sWS+3}], 0 offen")
                A("    s_nop 1")
            for k, sr in enumerate((4, 5, 6, 7, 8, 9, 10, 11)):
                A(f"    v_mov_b32 v12, s{sr}")
                A(f"    v_mov_b32 v13, {32+4*k}")
                A(f"    buffer_store_dword v12, v13, s[{sWS}:{sWS+3}], 0 offen")
                A("    s_nop 1")
            A("    s_branch L_end")
        A("    v_mov_b32 v12, s90")
        A("    v_mov_b32 v13, s92")
        A(f"    v_mov_b32 v14, s{sT0}")
        A(f"    v_mov_b32 v15, s94")
        A("    s_lshl_b32 s3, s2, 4")
        A("    v_mov_b32 v16, s3")
        A(f"    buffer_store_dwordx4 v[12:15], v16, s[{sWS}:{sWS+3}], 0 offen")
    A("L_end:")
    A("    s_endpgm")
    A('.section .rodata,"a"')
    A(".p2align 6")
    A(f".amdhsa_kernel {KNAME}")
    A(f"  .amdhsa_next_free_vgpr {nvgpr}")
    A(f"  .amdhsa_next_free_sgpr {100 if stamp else 90}")
    A(f"  .amdhsa_accum_offset {min(256,(nvgpr+3)//4*4)}")
    A("  .amdhsa_group_segment_fixed_size 0")
    A("  .amdhsa_kernarg_size 48")
    A("  .amdhsa_user_sgpr_count 2")
    A("  .amdhsa_user_sgpr_kernarg_segment_ptr 1")
    A("  .amdhsa_system_sgpr_workgroup_id_x 1")
    A(".end_amdhsa_kernel")
    txt = "\n".join(o) + "\n"
    if stamp:
        txt = txt.replace(f"    v_and_b32 v{vTMP}, 15, v0\n    v_lshl_add_u32 v{vTMP}, v{vTMP}, 6, v{vSR}\n",
                          f"    s_memrealtime s[94:95]\n    v_and_b32 v{vTMP}, 15, v0\n    v_lshl_add_u32 v{vTMP}, v{vTMP}, 6, v{vSR}\n", 1)
    return txt
```
